```python
import torch

def _softmax(x, axis=-1):
    return torch.softmax(x, dim=axis)
def _gelu(x):
    return torch.nn.functional.gelu(x, approximate="tanh")
def _silu(x):
    return torch.nn.functional.silu(x)
def _sigmoid(x):
    return torch.sigmoid(x)
def _layernorm(x, axis=-1, eps=1e-5):
    m = x.mean(dim=axis, keepdim=True)
    v = x.var(dim=axis, keepdim=True, unbiased=False)
    return (x - m) / torch.sqrt(v + eps)
def _scatter_add(tgt, idx, src, axis=0):
    return tgt.clone().index_add_(axis, idx, src)
def _segment_sum(src, seg, n):
    out = torch.zeros((n,) + src.shape[1:], dtype=src.dtype)
    return out.index_add_(0, seg, src)
def _pad(x, pw):
    flat = tuple(v for pair in reversed(pw) for v in pair)
    return torch.nn.functional.pad(x, flat)

kernel_name = 'parallel_sum__ssm_conv_h3__glu_gated_glu__prompt'

def setup_inputs():

    _w = (lambda a: (lambda t: t.to(torch.bfloat16) if t.is_floating_point() else t)(torch.as_tensor(a)))
    def _A_setup():
        B, S, D = 1, 2048, 640
        ks = 4
        return {
            "q": _w((lambda *s: torch.randn(*s, dtype=torch.bfloat16) * 0.05)(B, S, D)),
            "k": _w((lambda *s: torch.randn(*s, dtype=torch.bfloat16) * 0.4)(B, S, D)),
            "v": _w((lambda *s: torch.randn(*s, dtype=torch.bfloat16) * 0.4)(B, S, D)),
            "shift_k": _w((lambda *s: torch.randn(*s, dtype=torch.bfloat16) * 0.4)(D, ks) * 0.5),
            "ssm_k": _w((lambda *s: torch.randn(*s, dtype=torch.bfloat16) * 1.6)(D, S) * (1.0 / S ** 0.5)),
            "ssm_D": _w((lambda *s: torch.randn(*s, dtype=torch.bfloat16) * 0.4)(D)),
        }
    _A_in = _A_setup()

    def _B_setup():
        B, S, D, F = 1, 2048, 640, 1728
        return {
            "x": _w((lambda *s: torch.randn(*s, dtype=torch.bfloat16) * 0.05)(B, S, D)),
            "w_gate": _w((lambda *s: torch.randn(*s, dtype=torch.bfloat16) * 0.05)(D, F)),
            "w_up": _w((lambda *s: torch.randn(*s, dtype=torch.bfloat16) * 0.05)(D, F)),
            "w_down": _w((lambda *s: torch.randn(*s, dtype=torch.bfloat16) * 0.05)(F, D)),
        }
    _B_in = _B_setup()

    return {
        "A_q": _A_in["q"],
        "A_k": _A_in["k"],
        "A_v": _A_in["v"],
        "A_shift_k": _A_in["shift_k"],
        "A_ssm_k": _A_in["ssm_k"],
        "A_ssm_D": _A_in["ssm_D"],
        "B_x": _B_in["x"],
        "B_w_gate": _B_in["w_gate"],
        "B_w_up": _B_in["w_up"],
        "B_w_down": _B_in["w_down"],
    }

def reference(A_q, A_k, A_v, A_shift_k, A_ssm_k, A_ssm_D, B_x, B_w_gate, B_w_up, B_w_down):
    def _A_ref(q, k, v, shift_k, ssm_k, ssm_D):
        B, S, D = q.shape
        ks = shift_k.shape[-1]
        k_pad = _pad(k, ((0, 0), (ks - 1, 0), (0, 0)))
        k_shift = torch.zeros_like(k)
        for t in range(ks):
            k_shift = k_shift + k_pad[:, t:t + S, :] * shift_k[:, ks - 1 - t][None, None, :]
        kv = k_shift * v
        L = 2 * S
        kv_pad = _pad(kv, ((0, 0), (0, S), (0, 0)))
        kf_pad = _pad(ssm_k, ((0, 0), (0, S)))
        kv_f = (lambda x, axes=(-2,-1): torch.fft.rfft2(x.float(), dim=axes))(kv_pad[:, None, :, :], axes=(1, 2))
        kf_f = (lambda x, axes=(-2,-1): torch.fft.rfft2(x.float(), dim=axes))(kf_pad[:, None, :], axes=(1, 2))
        kf_f = (lambda x, *d: x.permute(*d))(kf_f, 1, 2, 0)
        y_f = kv_f * kf_f[None, :, :, :]
        y = (lambda x, s, axes=(-2,-1): torch.fft.irfft2(x, s=s, dim=axes).to(torch.bfloat16))(y_f, (1, L), axes=(1, 2))[:, 0, :S, :]
        y = y + kv * ssm_D[None, None, :]
        return q * y

    def _B_ref(x, w_gate, w_up, w_down):
        g = torch.einsum("bsd,df->bsf", x, w_gate)
        u = torch.einsum("bsd,df->bsf", x, w_up)
        h = _sigmoid(g) * u
        return torch.einsum("bsf,fd->bsd", h, w_down)

    x = A_q
    xn = _layernorm(x, axis=-1)
    return x + _A_ref(xn, A_k, A_v, A_shift_k, A_ssm_k, A_ssm_D) + _B_ref(xn, B_w_gate, B_w_up, B_w_down)
```

```python
S, D, F = 2048, 640, 1728
KNAME = 'parallel_sum__ssm_conv_h3__glu_gated_glu__prompt'

KA = dict(x=0, k=8, v=16, shift_k=24, ssm_k=32, ssm_D=40, bx=48, wg=56, wu=64, wd=72, out=80, dbg=88, ws=96)

WS_XN  = 0
WS_UR  = 0x280000
WS_WGU = 0x500000
WS_WD  = 0x940000
WS_H   = 0xB60000
WS_Z   = 0x1220000
WS_END = WS_Z + S*D*2

class Asm:
    def __init__(self):
        self.lines = []
        self.nlabel = 0
    def __call__(self, s):
        for l in s.strip('\n').split('\n'):
            self.lines.append('    ' + l.strip())
    def label(self, name):
        self.lines.append(name + ':')
    def newlabel(self, base='L'):
        self.nlabel += 1
        return f'{base}_{self.nlabel}'
    def text(self):
        return '\n'.join(self.lines) + '\n'

def load_ptr(a, sreg, name):
    a(f's_load_dwordx2 s[{sreg}:{sreg+1}], s[0:1], {KA[name]}')

def make_srd(a, dst, src, nbytes, add_lo=None):
    if add_lo is None:
        a(f's_mov_b32 s{dst}, s{src}')
        a(f's_mov_b32 s{dst+1}, s{src+1}')
    else:
        a(f's_add_u32 s{dst}, s{src}, {add_lo}')
        a(f's_addc_u32 s{dst+1}, s{src+1}, 0')
    a(f's_mov_b32 s{dst+2}, {nbytes}')
    a(f's_mov_b32 s{dst+3}, 0x00020000')

def kernel_desc(name, vgpr, sgpr, lds=0, agpr_off=None):
    acc = agpr_off if agpr_off is not None else ((vgpr + 3)//4)*4
    return f'''.section .rodata,"a"
.p2align 6
.amdhsa_kernel {name}
  .amdhsa_next_free_vgpr {vgpr}
  .amdhsa_next_free_sgpr {sgpr}
  .amdhsa_accum_offset {acc}
  .amdhsa_group_segment_fixed_size 0
  .amdhsa_kernarg_size 104
  .amdhsa_user_sgpr_count 2
  .amdhsa_user_sgpr_kernarg_segment_ptr 1
  .amdhsa_system_sgpr_workgroup_id_x 1
.end_amdhsa_kernel
.text
'''

def kernel_head(name):
    return f'''.globl {name}
.p2align 8
.type {name},@function
{name}:
'''
```

```python
from common import *
from prep import bf16r

CSTR = 4416
URL = 8*CSTR
LDS_TOTAL = URL + 64*144

def gen_conv():
    a = Asm()
    a('s_mov_b32 s33, s2')
    a(f's_load_dwordx4 s[36:39], s[0:1], 32')
    a(f's_load_dwordx2 s[40:41], s[0:1], 96')
    a(f's_cmp_ge_u32 s33, {D}')
    a('s_cbranch_scc1 conv_end')
    a('s_waitcnt lgkmcnt(0)')
    a('s_lshl_b32 s3, s33, 12')
    a('s_add_u32 s8, s36, s3')
    a('s_addc_u32 s9, s37, 0')
    a('s_mov_b32 s10, 4096')
    a('s_mov_b32 s11, 0x00020000')
    a(f's_add_u32 s12, s40, {WS_UR}')
    a('s_addc_u32 s13, s41, 0')
    a('s_add_u32 s12, s12, s3')
    a('s_addc_u32 s13, s13, 0')
    a('s_mov_b32 s14, 4096')
    a('s_mov_b32 s15, 0x00020000')
    a(f's_add_u32 s16, s40, {WS_Z}')
    a('s_addc_u32 s17, s41, 0')
    a('s_add_u32 s16, s16, s3')
    a('s_addc_u32 s17, s17, 0')
    a('s_mov_b32 s18, 4096')
    a('s_mov_b32 s19, 0x00020000')
    make_srd(a, 20, 38, D*2)
    a('v_lshlrev_b32 v1, 4, v0')
    a('buffer_load_dwordx4 v[8:11], v1, s[8:11], 0 offen')
    a('buffer_load_dwordx4 v[12:15], v1, s[8:11], 0 offen offset:16')
    a('buffer_load_dwordx4 v[16:19], v1, s[12:15], 0 offen')
    a('v_mov_b32 v2, s33')
    a('v_lshlrev_b32 v2, 1, v2')
    a('buffer_load_ushort v3, v2, s[20:23], 0 offen')
    def build_copies(vaddr):
        for c in range(8):
            if c % 2 == 0:
                j = c//2
                if j % 2 == 0:
                    a(f'ds_write_b128 v{vaddr}, v[{8+j}:{11+j}] offset:{c*CSTR}')
                else:
                    for i in range(4): a(f'v_mov_b32 v{20+i}, v{8+j+i}')
                    a(f'ds_write_b128 v{vaddr}, v[20:23] offset:{c*CSTR}')
            else:
                j = c//2
                for i in range(4):
                    a(f'v_alignbyte_b32 v{24+i}, v{9+j+i}, v{8+j+i}, 2')
                a(f'ds_write_b128 v{vaddr}, v[24:27] offset:{c*CSTR}')
    a('v_add_u32 v4, 128, v1')
    a('v_lshrrev_b32 v5, 3, v0')
    a('v_mul_u32_u24 v5, 144, v5')
    a('v_and_b32 v6, 7, v0')
    a('v_lshlrev_b32 v6, 4, v6')
    a('v_add_u32 v5, v5, v6')
    a('v_mov_b32 v28, 0')
    a('v_mov_b32 v29, 0')
    a('v_mov_b32 v30, 0')
    a('v_mov_b32 v31, 0')
    a(f'ds_write_b128 v5, v[28:31] offset:{URL+32*144}')
    a('s_waitcnt vmcnt(1)')
    a(f'ds_write_b128 v5, v[16:19] offset:{URL}')
    build_copies(4)
    a('v_cmp_gt_u32 vcc, 8, v0')
    a('s_and_saveexec_b64 s[24:25], vcc')
    a('s_cbranch_execz conv_headdone')
    a('v_subrev_u32 v7, 128, v1')
    a('buffer_load_dwordx4 v[8:11], v7, s[8:11], 0 offen')
    a('buffer_load_dwordx4 v[12:15], v7, s[8:11], 0 offen offset:16')
    a('s_waitcnt vmcnt(0)')
    build_copies(1)
    a.label('conv_headdone')
    a('s_mov_b64 exec, s[24:25]')
    a('v_and_b32 v8, 63, v0')
    a('v_lshrrev_b32 v9, 6, v0')
    a('v_and_b32 v10, 31, v8')
    a('v_lshrrev_b32 v11, 5, v8')
    a('v_add_u32 v12, 1, v10')
    a('v_and_b32 v13, 7, v12')
    a('v_lshrrev_b32 v12, 3, v12')
    a(f'v_mul_u32_u24 v13, {CSTR}, v13')
    a('v_add_u32 v12, v12, v11')
    a('v_lshlrev_b32 v12, 4, v12')
    a('v_add_u32 v13, v13, v12')
    a('v_lshlrev_b32 v12, 10, v9')
    a('v_add_u32 v40, v13, v12')
    a('v_sub_u32 v12, 31, v10')
    a('v_mul_u32_u24 v12, 144, v12')
    a('v_lshlrev_b32 v13, 4, v11')
    a('v_add_u32 v12, v12, v13')
    a(f'v_mul_u32_u24 v13, {8*144}, v9')
    a('v_add_u32 v41, v12, v13')
    for i in range(32):
        a(f'v_mov_b32 v{96+i}, 0')
    a('s_waitcnt lgkmcnt(0)')
    a('s_barrier')
    NS = 32
    AR, BR = 48, 80
    def areg(j): return AR + 4*(j % 6)
    def breg(j): return BR + 4*(j % 4)
    q = []
    def rdA(j):
        a(f'ds_read_b128 v[{areg(j)}:{areg(j)+3}], v40 offset:{32*j}'); q.append(('A', j))
    def rdB(j):
        a(f'ds_read_b128 v[{breg(j)}:{breg(j)+3}], v41 offset:{URL + (j//4)*144 + (j%4)*32}'); q.append(('B', j))
    def wait_for(items):
        last = max(q.index(it) for it in items)
        n = len(q) - 1 - last
        a(f's_waitcnt lgkmcnt({n})')
    rdA(0); rdB(0); rdA(1); rdA(2); rdB(1); rdA(3)
    for j in range(NS):
        if j + 4 <= NS + 1: rdA(j+4)
        if j + 2 < NS: rdB(j+2)
        wait_for([('A', j), ('A', j+2), ('B', j)])
        a(f'v_mfma_f32_32x32x16_bf16 v[96:111], v[{areg(j)}:{areg(j)+3}], v[{breg(j)}:{breg(j)+3}], v[96:111]')
        a(f'v_mfma_f32_32x32x16_bf16 v[112:127], v[{areg(j+2)}:{areg(j+2)+3}], v[{breg(j)}:{breg(j)+3}], v[112:127]')
    a('s_barrier')
    a('v_lshlrev_b32 v12, 13, v9')
    a('v_lshlrev_b32 v13, 4, v8')
    a('v_add_u32 v12, v12, v13')
    a('s_nop 7')
    a('s_nop 3')
    for t in range(2):
        for rq in range(4):
            r = 96 + 16*t + 4*rq
            a(f'ds_write_b128 v12, v[{r}:{r+3}] offset:{(t*4+rq)*1024}')
    a('s_waitcnt lgkmcnt(0)')
    a('s_barrier')
    a('v_lshlrev_b32 v3, 16, v3')
    for i in range(2):
        a(f'v_lshlrev_b32 v12, 4, v0')
        for w in range(4):
            a(f'ds_read_b128 v[{48+4*w}:{51+4*w}], v12 offset:{w*8192 + i*4096}')
        a(f'v_lshrrev_b32 v14, 6, v0')
        if i: a('v_add_u32 v14, 4, v14')
        a('v_lshlrev_b32 v14, 3, v14')
        a('v_lshlrev_b32 v15, 2, v11')
        a('v_add_u32 v14, v14, v15')
        a('v_lshlrev_b32 v15, 6, v10')
        a('v_add_u32 v14, v14, v15')
        a('v_sub_u32 v15, 2044, v14')
        a('v_lshrrev_b32 v16, 6, v15')
        a('v_mul_u32_u24 v16, 144, v16')
        a('v_and_b32 v15, 63, v15')
        a('v_lshlrev_b32 v15, 1, v15')
        a('v_add_u32 v15, v15, v16')
        a(f'ds_read_b64 v[64:65], v15 offset:{URL}')
        a('s_waitcnt lgkmcnt(1)')
        for e in range(4):
            a(f'v_add_f32 v{48+e}, v{48+e}, v{52+e}')
            a(f'v_add_f32 v{56+e}, v{56+e}, v{60+e}')
            a(f'v_add_f32 v{48+e}, v{48+e}, v{56+e}')
        a('s_waitcnt lgkmcnt(0)')
        for e in range(4):
            pe = 3 - e
            if pe % 2: a(f'v_and_b32 v20, 0xffff0000, v{64+pe//2}')
            else:      a(f'v_lshlrev_b32 v20, 16, v{64+pe//2}')
            a('v_mul_f32 v20, v20, v3')
            bf16r(a, 20, 20)
            bf16r(a, 48+e, 48+e)
            a(f'v_add_f32 v{48+e}, v{48+e}, v20')
        a('v_cvt_pk_bf16_f32 v48, v48, v49')
        a('v_cvt_pk_bf16_f32 v49, v50, v51')
        a('v_lshlrev_b32 v14, 1, v14')
        a('buffer_store_dwordx2 v[48:49], v14, s[16:19], 0 offen')
    a.label('conv_end')
    a('s_endpgm')
    return a.text(), D, LDS_TOTAL, 128
```

```python
from common import *
from prep import bf16r, sdivmod

BK = 64
def gen_gemm(name, K, TW, TX, NWT, NXT, w_off, w_rows, x_off, epilogue):
    a = Asm()
    ld = K*2
    NS = K//BK
    STG = (TW+TX)*128
    nlw, nlx = TW//32, TX//32
    L = nlw + nlx
    WT, XT = TW//64, TX//64
    a('s_mov_b32 s33, s2')
    a('s_load_dwordx2 s[40:41], s[0:1], 96')
    a('s_load_dwordx2 s[42:43], s[0:1], 0')
    a('s_load_dwordx2 s[44:45], s[0:1], 80')
    a('s_load_dwordx2 s[46:47], s[0:1], 40')
    a(f's_cmp_ge_u32 s33, {NWT*NXT}')
    a(f's_cbranch_scc1 {name}_end')
    sdivmod(a, 4, 5, 33, NWT, NWT*NXT, 3)
    a('s_waitcnt lgkmcnt(0)')
    make_srd(a, 8, 40, w_rows*ld, add_lo=w_off)
    make_srd(a, 12, 40, S*ld, add_lo=x_off)
    a(f's_mul_i32 s6, s5, {TW}')
    a(f's_mul_i32 s7, s4, {TX}')
    a('v_and_b32 v1, 63, v0')
    a('v_lshrrev_b32 v2, 6, v0')
    a('s_nop 0')
    a('v_readfirstlane_b32 s34, v2')
    a('v_lshrrev_b32 v3, 3, v1')
    a('v_and_b32 v4, 7, v1')
    a('v_lshrrev_b32 v5, 4, v1')
    for j in range(nlw):
        a(f'v_mul_u32_u24 v6, {TW//4}, v2')
        a(f'v_add_u32 v6, {8*j}, v6')
        a('v_add_u32 v6, v6, v3')
        a('v_add_u32 v6, s6, v6')
        a(f'v_mul_u32_u24 v6, {ld}, v6')
        a(f'v_add_u32 v7, {4*j}, v5')
        a('v_and_b32 v7, 7, v7')
        a('v_xor_b32 v7, v7, v4')
        a('v_lshlrev_b32 v7, 4, v7')
        a(f'v_add_u32 v{8+j}, v6, v7')
    for j in range(nlx):
        a(f'v_mul_u32_u24 v6, {TX//4}, v2')
        a(f'v_add_u32 v6, {8*j}, v6')
        a('v_add_u32 v6, v6, v3')
        a('v_add_u32 v6, s7, v6')
        a(f'v_mul_u32_u24 v6, {ld}, v6')
        a(f'v_add_u32 v7, {4*j}, v5')
        a('v_and_b32 v7, 7, v7')
        a('v_xor_b32 v7, v7, v4')
        a('v_lshlrev_b32 v7, 4, v7')
        a(f'v_add_u32 v{8+nlw+j}, v6, v7')
    a(f's_mul_i32 s35, s34, {TW//4*128}')
    a(f's_mul_i32 s36, s34, {TX//4*128}')
    a(f's_add_u32 s36, s36, {TW*128}')
    a('v_and_b32 v3, 31, v1')
    a('v_lshrrev_b32 v4, 5, v1')
    a('v_lshrrev_b32 v5, 1, v3')
    a('v_and_b32 v5, 7, v5')
    a('v_lshrrev_b32 v6, 1, v2')
    a('v_and_b32 v7, 1, v2')
    for ks in range(4):
        a(f'v_add_u32 v24, {2*ks}, v4')
        a('v_xor_b32 v24, v24, v5')
        a('v_lshlrev_b32 v24, 4, v24')
        a('v_lshlrev_b32 v25, 7, v3')
        a('v_add_u32 v24, v24, v25')
        a(f'v_mul_u32_u24 v25, {TW//2*128}, v6')
        a(f'v_add_u32 v{16+ks}, v24, v25')
        a(f'v_mul_u32_u24 v25, {TX//2*128}, v7')
        a(f'v_add_u32 v25, {TW*128}, v25')
        a(f'v_add_u32 v{20+ks}, v24, v25')
    ACC = 64
    nacc = WT*XT*16
    for i in range(nacc):
        a(f'v_mov_b32 v{ACC+i}, 0')
    def accreg(tw, tx): return ACC + 16*(tw*XT + tx)
    def issue_loads(s):
        buf = (s % 2)*STG
        a(f's_mov_b32 s37, {s*128}')
        for j in range(nlw):
            a(f's_add_u32 m0, s35, {buf + 8*j*128}')
            a('s_nop 0')
            a(f'buffer_load_dwordx4 v{8+j}, s[8:11], s37 offen lds')
        for j in range(nlx):
            a(f's_add_u32 m0, s36, {buf + 8*j*128}')
            a('s_nop 0')
            a(f'buffer_load_dwordx4 v{8+nlw+j}, s[12:15], s37 offen lds')
    issue_loads(0)
    issue_loads(1)
    nfr = WT + XT
    for s in range(NS):
        buf = (s % 2)*STG
        a(f's_waitcnt vmcnt({L if s == 0 else 0})')
        a('s_barrier')
        if s >= 1 and s+1 < NS:
            issue_loads(s+1)
        def frag(set_, i): return 32 + 16*set_ + 4*i
        def rd(ks):
            st = ks % 2
            for t in range(WT):
                a(f'ds_read_b128 v[{frag(st,t)}:{frag(st,t)+3}], v{16+ks} offset:{buf + 4096*t}')
            for t in range(XT):
                a(f'ds_read_b128 v[{frag(st,WT+t)}:{frag(st,WT+t)+3}], v{20+ks} offset:{buf + 4096*t}')
        rd(0); rd(1)
        for ks in range(4):
            st = ks % 2
            a(f's_waitcnt lgkmcnt({nfr if ks < 3 else 0})')
            for tw in range(WT):
                for tx in range(XT):
                    r = accreg(tw, tx)
                    a(f'v_mfma_f32_32x32x16_bf16 v[{r}:{r+15}], v[{frag(st,tw)}:{frag(st,tw)+3}], v[{frag(st,WT+tx)}:{frag(st,WT+tx)+3}], v[{r}:{r+15}]')
            if ks + 2 < 4:
                rd(ks+2)
    a('s_nop 7')
    a('s_nop 7')
    epilogue(a, accreg, WT, XT, TW, TX)
    a.label(f'{name}_end')
    a('s_endpgm')
    return a.text(), NWT*NXT, 2*STG, ACC + nacc

def epi1(a, accreg, WT, XT, TW, TX):
    make_srd(a, 16, 40, S*F*2, add_lo=WS_H)
    a('v_and_b32 v3, 31, v1')
    a('v_lshrrev_b32 v4, 5, v1')
    a('v_and_b32 v7, 1, v2')
    a('v_lshrrev_b32 v6, 1, v2')
    a(f'v_mul_u32_u24 v5, {TX//2}, v7')
    a('v_add_u32 v5, v5, v3')
    a('v_add_u32 v5, s7, v5')
    a(f'v_mul_u32_u24 v5, {F*2}, v5')
    a('s_lshr_b32 s3, s6, 1')
    a('v_lshlrev_b32 v6, 5, v6')
    a('v_add_u32 v6, s3, v6')
    a('v_lshlrev_b32 v4, 2, v4')
    a('v_add_u32 v6, v6, v4')
    a('v_lshlrev_b32 v6, 1, v6')
    a('v_add_u32 v5, v5, v6')
    a('s_mov_b32 s3, 0xbfb8aa3b')
    for tx in range(XT):
        for rq in range(4):
            for e in range(4):
                g = accreg(0, tx) + 4*rq + e
                u = accreg(1, tx) + 4*rq + e
                bf16r(a, g, g)
                bf16r(a, u, u)
                a(f'v_mul_f32 v24, s3, v{g}')
                a('v_exp_f32 v24, v24')
                a('s_nop 0')
                a('v_add_f32 v24, 1.0, v24')
                a('v_rcp_f32 v24, v24')
                a('s_nop 0')
                bf16r(a, 24, 24)
                a(f'v_mul_f32 v{28+e}, v24, v{u}')
            a('v_cvt_pk_bf16_f32 v26, v28, v29')
            a('v_cvt_pk_bf16_f32 v27, v30, v31')
            a(f's_mov_b32 s4, {tx*32*F*2}')
            a(f'buffer_store_dwordx2 v[26:27], v5, s[16:19], s4 offen offset:{rq*16}')

def epi2(a, accreg, WT, XT, TW, TX):
    make_srd(a, 16, 42, S*D*2)
    make_srd(a, 20, 40, S*D*2)
    make_srd(a, 24, 40, S*D*2, add_lo=WS_Z)
    make_srd(a, 28, 44, S*D*2)
    a('v_and_b32 v3, 31, v1')
    a('v_lshrrev_b32 v4, 5, v1')
    a('v_and_b32 v7, 1, v2')
    a('v_lshrrev_b32 v6, 1, v2')
    a(f'v_mul_u32_u24 v5, {TX//2}, v7')
    a('v_add_u32 v5, v5, v3')
    a('v_add_u32 v5, s7, v5')
    a(f'v_mul_u32_u24 v6, {TW//2}, v6')
    a('v_add_u32 v6, s6, v6')
    a('v_lshlrev_b32 v4, 2, v4')
    a('v_add_u32 v6, v6, v4')
    a(f'v_mul_u32_u24 v8, {D*2}, v5')
    a('v_lshlrev_b32 v9, 1, v6')
    a('v_add_u32 v8, v8, v9')
    a(f'v_lshlrev_b32 v9, 12, v6')
    a('v_lshlrev_b32 v10, 1, v5')
    a('v_add_u32 v9, v9, v10')
    for e in range(4):
        a(f'v_add_u32 v{20+e}, {e*4096}, v9')
    for tw in range(WT):
        for tx in range(XT):
            for rq in range(4):
                assert tx == 0
                offsd = tx*32*D*2 + (tw*32 + rq*8)*2
                offz = (tw*32 + rq*8)*4096 + tx*64
                a(f'buffer_load_dwordx2 v[12:13], v8, s[16:19], 0 offen offset:{offsd}')
                a(f'buffer_load_dwordx2 v[14:15], v8, s[20:23], 0 offen offset:{offsd}')
                a(f's_mov_b32 s3, {offz}')
                for e in range(4):
                    a(f'buffer_load_ushort v{16+e}, v{20+e}, s[24:27], s3 offen')
                a('s_waitcnt vmcnt(0)')
                for e in range(4):
                    r = accreg(tw, tx) + 4*rq + e
                    if e % 2:
                        a(f'v_and_b32 v24, 0xffff0000, v{12+e//2}')
                        a(f'v_and_b32 v25, 0xffff0000, v{14+e//2}')
                    else:
                        a(f'v_lshlrev_b32 v24, 16, v{12+e//2}')
                        a(f'v_lshlrev_b32 v25, 16, v{14+e//2}')
                    a(f'v_lshlrev_b32 v26, 16, v{16+e}')
                    a('v_mul_f32 v25, v25, v26')
                    bf16r(a, 25, 25)
                    a('v_add_f32 v24, v24, v25')
                    bf16r(a, 24, 24)
                    bf16r(a, r, r)
                    a(f'v_add_f32 v{28+e}, v24, v{r}')
                a('v_cvt_pk_bf16_f32 v26, v28, v29')
                a('v_cvt_pk_bf16_f32 v27, v30, v31')
                a(f'buffer_store_dwordx2 v[26:27], v8, s[28:31], 0 offen offset:{offsd}')

def gen_gemm1():
    return gen_gemm('gemm1', D, 128, 128, 27, 16, WS_WGU, 2*F, WS_XN, epi1)

def epi2_pre(a, *args):
    for e in range(1, 4):
        pass
    return epi2(a, *args)

def gen_gemm2():
    return gen_gemm('gemm2', F, 128, 64, 5, 32, WS_WD, D, WS_H, epi2)
```

```python
from common import *

def sdivmod(a, q, r, src, c, maxv, tmp):
    for sh in range(8, 24):
        m = ((1 << sh) + c - 1)//c
        if all((v*m) >> sh == v//c for v in range(maxv)):
            break
    else:
        raise Exception('no magic')
    a(f's_mul_i32 s{q}, s{src}, {m}')
    a(f's_lshr_b32 s{q}, s{q}, {sh}')
    a(f's_mul_i32 s{tmp}, s{q}, {c}')
    a(f's_sub_u32 s{r}, s{src}, s{tmp}')

def bf16r(a, dst, src):
    a(f'v_cvt_pk_bf16_f32 v{dst}, v{src}, v{src}')
    a(f'v_lshlrev_b32 v{dst}, 16, v{dst}')

TSTRIDE = 144

def transposed_tile_out(a, srd_dst, vdst_off):
    a('s_waitcnt lgkmcnt(0)')
    a('s_barrier')
    a(f'v_lshrrev_b32 v20, 3, v0')
    a(f'v_mul_u32_u24 v20, {TSTRIDE}, v20')
    a(f'v_and_b32 v21, 7, v0')
    a(f'v_lshlrev_b32 v21, 4, v21')
    a(f'v_add_u32 v20, v20, v21')
    a(f'ds_read_b128 v[24:27], v20')
    a(f'ds_read_b128 v[28:31], v20 offset:{32*TSTRIDE}')
    a('s_waitcnt lgkmcnt(1)')
    a(f'buffer_store_dwordx4 v[24:27], v{vdst_off}, s[{srd_dst}:{srd_dst+3}], 0 offen')
    a('s_waitcnt lgkmcnt(0)')
    a(f'buffer_store_dwordx4 v[28:31], v{vdst_off+1}, s[{srd_dst}:{srd_dst+3}], 0 offen')

def gen_prep():
    a = Asm()
    NA, NB, NC = 128, 320, 810
    a('s_mov_b32 s33, s2')
    a(f's_load_dwordx16 s[36:51], s[0:1], 0')
    a(f's_load_dwordx4 s[52:55], s[0:1], 64')
    a(f's_load_dwordx2 s[56:57], s[0:1], 96')
    a(f's_cmp_ge_u32 s33, {NA+NB+NC}')
    a('s_cbranch_scc1 prep_end')
    a('s_waitcnt lgkmcnt(0)')
    a(f's_cmp_ge_u32 s33, {NA}')
    a('s_cbranch_scc1 prep_jobB')
    make_srd(a, 8, 36, S*D*2)
    make_srd(a, 12, 56, S*D*2)
    a('s_lshl_b32 s3, s33, 4')
    a('v_lshrrev_b32 v1, 4, v0')
    a('v_add_u32 v1, s3, v1')
    a('v_mul_u32_u24 v1, 1280, v1')
    a('v_and_b32 v2, 15, v0')
    a('v_lshlrev_b32 v2, 4, v2')
    a('v_add_u32 v1, v1, v2')
    for c in range(5):
        a(f'buffer_load_dwordx4 v[{8+4*c}:{11+4*c}], v1, s[8:11], 0 offen offset:{c*256}')
    a('s_waitcnt vmcnt(0)')
    for j in range(20):
        a(f'v_lshlrev_b32 v{32+2*j}, 16, v{8+j}')
        a(f'v_and_b32 v{33+2*j}, 0xffff0000, v{8+j}')
    a('v_add_f32 v4, v32, v33')
    for j in range(2, 40):
        a(f'v_add_f32 v4, v4, v{32+j}')
    def red16(v):
        for r in (8, 4, 2, 1):
            a('s_nop 1')
            a(f'v_add_f32_dpp v{v}, v{v}, v{v} row_ror:{r} row_mask:0xf bank_mask:0xf')
    red16(4)
    a('v_mul_f32 v4, 0x3acccccd, v4')
    a('v_sub_f32 v5, v32, v4')
    a('v_mul_f32 v6, v5, v5')
    for j in range(1, 40):
        a(f'v_sub_f32 v5, v{32+j}, v4')
        a(f'v_fmac_f32 v6, v5, v5')
    red16(6)
    a('v_mul_f32 v6, 0x3acccccd, v6')
    bf16r(a, 4, 4)
    bf16r(a, 6, 6)
    a('v_add_f32 v6, 0x3727c5ac, v6')
    bf16r(a, 6, 6)
    a('v_sqrt_f32 v6, v6')
    a('s_nop 0')
    bf16r(a, 6, 6)
    a('v_rcp_f32 v7, v6')
    a('s_nop 0')
    for j in range(20):
        a(f'v_sub_f32 v28, v{32+2*j}, v4')
        a(f'v_sub_f32 v29, v{33+2*j}, v4')
        a(f'v_cvt_pk_bf16_f32 v30, v28, v29')
        a(f'v_lshlrev_b32 v28, 16, v30')
        a(f'v_and_b32 v29, 0xffff0000, v30')
        a(f'v_mul_f32 v28, v28, v7')
        a(f'v_mul_f32 v29, v29, v7')
        a(f'v_cvt_pk_bf16_f32 v{8+j}, v28, v29')
    for c in range(5):
        a(f'buffer_store_dwordx4 v[{8+4*c}:{11+4*c}], v1, s[12:15], 0 offen offset:{c*256}')
    a('s_branch prep_end')
    a.label('prep_jobB')
    a(f's_cmp_ge_u32 s33, {NA+NB}')
    a('s_cbranch_scc1 prep_jobC')
    a(f's_sub_u32 s3, s33, {NA}')
    sdivmod(a, 4, 5, 3, 10, NB, 6)
    make_srd(a, 8, 38, S*D*2)
    make_srd(a, 12, 40, S*D*2)
    make_srd(a, 16, 42, D*4*2)
    make_srd(a, 20, 56, S*D*2, add_lo=WS_UR)
    a('s_lshl_b32 s4, s4, 6')
    a('s_lshl_b32 s5, s5, 6')
    a('v_and_b32 v2, 7, v0')
    a('v_lshlrev_b32 v3, 3, v2')
    a('v_add_u32 v3, s5, v3')
    a('v_lshlrev_b32 v4, 3, v3')
    for c in range(4):
        a(f'buffer_load_dwordx4 v[{96+4*c}:{99+4*c}], v4, s[16:19], 0 offen offset:{16*c}')
    a('v_lshrrev_b32 v5, 3, v0')
    a('v_add_u32 v5, s4, v5')
    a('v_mul_u32_u24 v6, 1280, v5')
    a('v_lshlrev_b32 v7, 1, v3')
    a('v_add_u32 v6, v6, v7')
    for i in range(2):
        for j in range(4):
            off = 32*1280*i - 1280*j
            a(f'v_add_u32 v7, {off}, v6')
            a(f'buffer_load_dwordx4 v[{32+16*i+4*j}:{35+16*i+4*j}], v7, s[8:11], 0 offen')
        a(f'v_add_u32 v7, {32*1280*i}, v6')
        a(f'buffer_load_dwordx4 v[{64+4*i}:{67+4*i}], v7, s[12:15], 0 offen')
    a('v_lshrrev_b32 v5, 3, v0')
    a('v_sub_u32 v8, 63, v5')
    a('v_lshlrev_b32 v8, 1, v8')
    a(f'v_mul_u32_u24 v9, {8*TSTRIDE}, v2')
    a('v_add_u32 v8, v8, v9')
    a('s_waitcnt vmcnt(0)')
    for i in range(2):
        for e in range(8):
            dw, hi = e//2, e % 2
            def get(dst, reg):
                if hi: a(f'v_and_b32 v{dst}, 0xffff0000, v{reg}')
                else:  a(f'v_lshlrev_b32 v{dst}, 16, v{reg}')
            first = True
            for jt in (3, 2, 1, 0):
                get(10, 32+16*i+4*jt+dw)
                wreg = 96 + 2*e + jt//2
                if jt % 2: a(f'v_and_b32 v11, 0xffff0000, v{wreg}')
                else:      a(f'v_lshlrev_b32 v11, 16, v{wreg}')
                a('v_mul_f32 v10, v10, v11')
                bf16r(a, 10, 10)
                if first:
                    a('v_mov_b32 v12, v10')
                    first = False
                else:
                    a('v_add_f32 v12, v12, v10')
                    bf16r(a, 12, 12)
            get(10, 64+4*i+dw)
            a('v_mul_f32 v12, v12, v10')
            a('v_cvt_pk_bf16_f32 v12, v12, v12')
            a(f'ds_write_b16 v8, v12 offset:{e*TSTRIDE}' if i == 0 else f'ds_write_b16 v13, v12 offset:{e*TSTRIDE}')
        if i == 0:
            a('v_subrev_u32 v13, 64, v8')
    a('v_lshrrev_b32 v5, 3, v0')
    a('v_add_u32 v5, s5, v5')
    a('v_lshlrev_b32 v5, 12, v5')
    a('s_sub_u32 s6, 1984, s4')
    a('s_lshl_b32 s6, s6, 1')
    a('v_lshlrev_b32 v6, 4, v2')
    a('v_add_u32 v5, v5, v6')
    a('v_add_u32 v14, s6, v5')
    a(f'v_add_u32 v15, {32*4096}, v14')
    transposed_tile_out(a, 20, 14)
    a('s_branch prep_end')
    a.label('prep_jobC')
    a(f's_sub_u32 s3, s33, {NA+NB}')
    sdivmod(a, 4, 5, 3, 270, NC, 6)
    a('s_cmp_eq_u32 s4, 2')
    a('s_cbranch_scc1 prep_jobC_down')
    sdivmod(a, 6, 7, 5, 27, 270, 3)
    a('s_cmp_eq_u32 s4, 0')
    a('s_cselect_b32 s8, s50, s52')
    a('s_cselect_b32 s9, s51, s53')
    a(f's_mov_b32 s10, {D*F*2}')
    a('s_mov_b32 s11, 0x00020000')
    make_srd(a, 12, 56, S*D*8, add_lo=WS_WGU)
    a('s_lshl_b32 s6, s6, 6')
    a('s_lshl_b32 s7, s7, 6')
    a(f's_mov_b32 s16, {F*2}')
    a(f's_mov_b32 s17, {D*2}')
    a('v_lshrrev_b32 v5, 3, v0')
    for i in range(2):
        a(f'v_add_u32 v6, s7, v5')
        if i: a('v_add_u32 v6, 32, v6')
        a('v_lshrrev_b32 v7, 5, v6')
        a('v_lshlrev_b32 v7, 6, v7')
        a('v_and_b32 v6, 31, v6')
        a('v_add_u32 v6, v6, v7')
        a('s_lshl_b32 s18, s4, 5')
        a('v_add_u32 v6, s18, v6')
        a(f'v_add_u32 v{14+i}, 0, v6')
    a('s_branch prep_jobC_common')
    a.label('prep_jobC_down')
    sdivmod(a, 6, 7, 5, 10, 270, 3)
    make_srd(a, 8, 54, D*F*2)
    make_srd(a, 12, 56, S*D*8, add_lo=WS_WD)
    a('s_lshl_b32 s6, s6, 6')
    a('s_lshl_b32 s7, s7, 6')
    a(f's_mov_b32 s16, {D*2}')
    a(f's_mov_b32 s17, {F*2}')
    a('v_lshrrev_b32 v5, 3, v0')
    a('v_add_u32 v14, s7, v5')
    a('v_add_u32 v15, 32, v14')
    a.label('prep_jobC_common')
    a('v_and_b32 v2, 7, v0')
    a('v_lshlrev_b32 v6, 4, v2')
    a('s_lshl_b32 s18, s6, 1')
    a('v_add_u32 v6, s18, v6')
    a('v_mul_lo_u32 v14, v14, s17')
    a('v_mul_lo_u32 v15, v15, s17')
    a('v_add_u32 v14, v14, v6')
    a('v_add_u32 v15, v15, v6')
    a('v_lshrrev_b32 v5, 3, v0')
    a('v_add_u32 v5, s6, v5')
    a('v_mul_lo_u32 v5, v5, s16')
    a('v_lshlrev_b32 v6, 4, v2')
    a('s_lshl_b32 s18, s7, 1')
    a('v_add_u32 v6, s18, v6')
    a('v_add_u32 v5, v5, v6')
    a('s_lshl_b32 s18, s16, 5')
    a('buffer_load_dwordx4 v[32:35], v5, s[8:11], 0 offen')
    a('buffer_load_dwordx4 v[36:39], v5, s[8:11], s18 offen')
    a('v_lshrrev_b32 v8, 3, v0')
    a('v_lshlrev_b32 v8, 1, v8')
    a(f'v_mul_u32_u24 v9, {8*TSTRIDE}, v2')
    a('v_add_u32 v8, v8, v9')
    a('s_waitcnt vmcnt(0)')
    for i in range(2):
        for e in range(8):
            op = 'ds_write_b16_d16_hi' if e % 2 else 'ds_write_b16'
            a(f'{op} v8, v{32+4*i+e//2} offset:{e*TSTRIDE+64*i}')
    transposed_tile_out(a, 12, 14)
    a.label('prep_end')
    a('s_endpgm')
    return a.text(), NA+NB+NC
```

```python
import sys
from common import *
import prep

def build(which):
    out = []
    launches = []
    body = []
    if 'prep' in which:
        txt, n = prep.gen_prep()
        body.append(kernel_head('prep_kernel') + txt + kernel_desc('prep_kernel', 112, 64))
        launches.append(f'; @launch kernel=prep_kernel grid=({n},1,1) block=(256,1,1) lds={64*prep.TSTRIDE}')
    if 'conv' in which:
        import conv
        txt, n, lds, vg = conv.gen_conv()
        body.append(kernel_head('conv_kernel') + txt + kernel_desc('conv_kernel', vg, 64))
        launches.append(f'; @launch kernel=conv_kernel grid=({n},1,1) block=(256,1,1) lds={lds}')
    if 'gemm1' in which:
        import gemm
        txt, n, lds, vg = gemm.gen_gemm1()
        body.append(kernel_head('gemm1_kernel') + txt + kernel_desc('gemm1_kernel', vg, 64))
        launches.append(f'; @launch kernel=gemm1_kernel grid=({n},1,1) block=(256,1,1) lds={lds}')
    if 'gemm2' in which:
        import gemm
        txt, n, lds, vg = gemm.gen_gemm2()
        body.append(kernel_head('gemm2_kernel') + txt + kernel_desc('gemm2_kernel', vg, 64))
        launches.append(f'; @launch kernel=gemm2_kernel grid=({n},1,1) block=(256,1,1) lds={lds}')
    hdr = '\n'.join(launches) + '\n.amdgcn_target "amdgcn-amd-amdhsa--gfx950"\n.text\n'
    return hdr + '\n'.join(body)

if __name__ == '__main__':
    which = sys.argv[2:] if len(sys.argv) > 2 else ['prep', 'conv', 'gemm1', 'gemm2']
    open(sys.argv[1], 'w').write(build(which))
```

```python
from common import *
from prep import bf16r, sdivmod

BK = 64
def gen_gemm(name, K, TW, TX, NWT, NXT, w_off, w_rows, x_off, epilogue, NBUF=2):
    a = Asm()
    ld = K*2
    NS = K//BK
    STG = (TW+TX)*128
    nlw, nlx = TW//32, TX//32
    L = nlw + nlx
    WT, XT = TW//64, TX//64
    FA = 64
    a('s_mov_b32 s33, s2')
    a('s_load_dwordx2 s[40:41], s[0:1], 96')
    a('s_load_dwordx2 s[42:43], s[0:1], 0')
    a('s_load_dwordx2 s[44:45], s[0:1], 80')
    a('s_load_dwordx2 s[46:47], s[0:1], 40')
    a(f's_cmp_ge_u32 s33, {NWT*NXT}')
    a(f's_cbranch_scc1 {name}_end')
    XPX = NXT//8
    a('s_and_b32 s38, s33, 7')
    a('s_lshr_b32 s39, s33, 3')
    sdivmod(a, 5, 4, 39, XPX, NWT*NXT, 3)
    a(f's_mul_i32 s38, s38, {XPX}')
    a('s_add_u32 s4, s4, s38')
    a('s_waitcnt lgkmcnt(0)')
    make_srd(a, 8, 40, w_rows*ld, add_lo=w_off)
    make_srd(a, 12, 40, S*ld, add_lo=x_off)
    a(f's_mul_i32 s6, s5, {TW}')
    a(f's_mul_i32 s7, s4, {TX}')
    a('v_and_b32 v1, 63, v0')
    a('v_lshrrev_b32 v2, 6, v0')
    a('s_nop 0')
    a('v_readfirstlane_b32 s34, v2')
    a('v_lshrrev_b32 v3, 3, v1')
    a('v_and_b32 v4, 7, v1')
    a('v_lshrrev_b32 v5, 4, v1')
    for j in range(nlw):
        a(f'v_mul_u32_u24 v6, {TW//4}, v2')
        a(f'v_add_u32 v6, {8*j}, v6')
        a('v_add_u32 v6, v6, v3')
        a('v_add_u32 v6, s6, v6')
        a(f'v_mul_u32_u24 v6, {ld}, v6')
        a(f'v_add_u32 v7, {4*j}, v5')
        a('v_and_b32 v7, 7, v7')
        a('v_xor_b32 v7, v7, v4')
        a('v_lshlrev_b32 v7, 4, v7')
        a(f'v_add_u32 v{8+j}, v6, v7')
    for j in range(nlx):
        a(f'v_mul_u32_u24 v6, {TX//4}, v2')
        a(f'v_add_u32 v6, {8*j}, v6')
        a('v_add_u32 v6, v6, v3')
        a('v_add_u32 v6, s7, v6')
        a(f'v_mul_u32_u24 v6, {ld}, v6')
        a(f'v_add_u32 v7, {4*j}, v5')
        a('v_and_b32 v7, 7, v7')
        a('v_xor_b32 v7, v7, v4')
        a('v_lshlrev_b32 v7, 4, v7')
        a(f'v_add_u32 v{8+nlw+j}, v6, v7')
    a(f's_mul_i32 s35, s34, {TW//4*128}')
    a(f's_mul_i32 s36, s34, {TX//4*128}')
    a(f's_add_u32 s36, s36, {TW*128}')
    a('v_and_b32 v3, 31, v1')
    a('v_lshrrev_b32 v4, 5, v1')
    a('v_lshrrev_b32 v5, 1, v3')
    a('v_and_b32 v5, 7, v5')
    a('v_lshrrev_b32 v6, 1, v2')
    a('v_and_b32 v7, 1, v2')
    for ks in range(4):
        a(f'v_add_u32 v24, {2*ks}, v4')
        a('v_xor_b32 v24, v24, v5')
        a('v_lshlrev_b32 v24, 4, v24')
        a('v_lshlrev_b32 v25, 7, v3')
        a('v_add_u32 v24, v24, v25')
        a(f'v_mul_u32_u24 v25, {TW//2*128}, v6')
        a(f'v_add_u32 v{FA+ks}, v24, v25')
        a(f'v_mul_u32_u24 v25, {TX//2*128}, v7')
        a(f'v_add_u32 v25, {TW*128}, v25')
        a(f'v_add_u32 v{FA+4+ks}, v24, v25')
    ACC = 72
    nacc = WT*XT*16
    for i in range(nacc):
        a(f'v_mov_b32 v{ACC+i}, 0')
    HI = ACC + nacc
    for i in range(8):
        a(f'v_add_u32 v{HI+i}, 0xc000, v{FA+i}')
    def dsaddr(i, off):
        return (FA+i, off) if off < 0xc000 else (HI+i, off - 0xc000)
    def accreg(tw, tx): return ACC + 16*(tw*XT + tx)
    def issue_loads(s):
        buf = (s % NBUF)*STG
        a(f's_mov_b32 s37, {s*128}')
        for j in range(nlw):
            a(f's_add_u32 m0, s35, {buf + 8*j*128}')
            a('s_nop 0')
            a(f'buffer_load_dwordx4 v{8+j}, s[8:11], s37 offen lds')
        for j in range(nlx):
            a(f's_add_u32 m0, s36, {buf + 8*j*128}')
            a('s_nop 0')
            a(f'buffer_load_dwordx4 v{8+nlw+j}, s[12:15], s37 offen lds')
    for s0 in range(NBUF-1):
        issue_loads(s0)
    nfr = WT + XT
    FR = HI + 8
    for s in range(NS):
        buf = (s % NBUF)*STG
        a(f's_waitcnt vmcnt({L*max(0, min(NBUF-2, NS-1-s))})')
        a('s_barrier')
        if s+NBUF-1 < NS:
            issue_loads(s+NBUF-1)
        def frag(set_, i): return 32 + 16*set_ + 4*i if nfr <= 4 else FR + 24*set_ + 4*i
        def rd(ks):
            st = ks % 2
            for t in range(WT):
                r_, o_ = dsaddr(ks, buf + 4096*t)
                a(f'ds_read_b128 v[{frag(st,t)}:{frag(st,t)+3}], v{r_} offset:{o_}')
            for t in range(XT):
                r_, o_ = dsaddr(4+ks, buf + 4096*t)
                a(f'ds_read_b128 v[{frag(st,WT+t)}:{frag(st,WT+t)+3}], v{r_} offset:{o_}')
        rd(0); rd(1)
        for ks in range(4):
            st = ks % 2
            a(f's_waitcnt lgkmcnt({nfr if ks < 3 else 0})')
            for tw in range(WT):
                for tx in range(XT):
                    r = accreg(tw, tx)
                    a(f'v_mfma_f32_32x32x16_bf16 v[{r}:{r+15}], v[{frag(st,tw)}:{frag(st,tw)+3}], v[{frag(st,WT+tx)}:{frag(st,WT+tx)+3}], v[{r}:{r+15}]')
            if ks + 2 < 4:
                rd(ks+2)
    a('s_nop 7')
    a('s_nop 7')
    epilogue(a, accreg, WT, XT, TW, TX)
    a.label(f'{name}_end')
    a('s_endpgm')
    return a.text(), NWT*NXT, NBUF*STG, ACC + nacc + 8 + (48 if nfr > 4 else 0)

def epi1(a, accreg, WT, XT, TW, TX):
    make_srd(a, 16, 40, S*F*2, add_lo=WS_H)
    a('v_and_b32 v3, 31, v1')
    a('v_lshrrev_b32 v4, 5, v1')
    a('v_and_b32 v7, 1, v2')
    a('v_lshrrev_b32 v6, 1, v2')
    a(f'v_mul_u32_u24 v5, {TX//2}, v7')
    a('v_add_u32 v5, v5, v3')
    a('v_add_u32 v5, s7, v5')
    a(f'v_mul_u32_u24 v5, {F*2}, v5')
    a('s_lshr_b32 s3, s6, 1')
    a('v_lshlrev_b32 v6, 5, v6')
    a('v_add_u32 v6, s3, v6')
    a('v_lshlrev_b32 v4, 2, v4')
    a('v_add_u32 v6, v6, v4')
    a('v_lshlrev_b32 v6, 1, v6')
    a('v_add_u32 v5, v5, v6')
    a('s_mov_b32 s3, 0xbfb8aa3b')
    for tx in range(XT):
        for rq in range(4):
            for e in range(4):
                g = accreg(0, tx) + 4*rq + e
                u = accreg(1, tx) + 4*rq + e
                bf16r(a, g, g)
                bf16r(a, u, u)
                a(f'v_mul_f32 v24, s3, v{g}')
                a('v_exp_f32 v24, v24')
                a('s_nop 0')
                a('v_add_f32 v24, 1.0, v24')
                a('v_rcp_f32 v24, v24')
                a('s_nop 0')
                bf16r(a, 24, 24)
                a(f'v_mul_f32 v{28+e}, v24, v{u}')
            a('v_cvt_pk_bf16_f32 v26, v28, v29')
            a('v_cvt_pk_bf16_f32 v27, v30, v31')
            a(f's_mov_b32 s4, {tx*32*F*2}')
            a(f'buffer_store_dwordx2 v[26:27], v5, s[16:19], s4 offen offset:{rq*16}')

def epi2(a, accreg, WT, XT, TW, TX):
    make_srd(a, 16, 42, S*D*2)
    make_srd(a, 20, 40, S*D*2)
    make_srd(a, 24, 40, S*D*2, add_lo=WS_Z)
    make_srd(a, 28, 44, S*D*2)
    a('v_and_b32 v3, 31, v1')
    a('v_lshrrev_b32 v4, 5, v1')
    a('v_and_b32 v7, 1, v2')
    a('v_lshrrev_b32 v6, 1, v2')
    a(f'v_mul_u32_u24 v5, {TX//2}, v7')
    a('v_add_u32 v5, v5, v3')
    a('v_add_u32 v5, s7, v5')
    a(f'v_mul_u32_u24 v6, {TW//2}, v6')
    a('v_add_u32 v6, s6, v6')
    a('v_lshlrev_b32 v4, 2, v4')
    a('v_add_u32 v6, v6, v4')
    a(f'v_mul_u32_u24 v8, {D*2}, v5')
    a('v_lshlrev_b32 v9, 1, v6')
    a('v_add_u32 v8, v8, v9')
    a(f'v_lshlrev_b32 v9, 12, v6')
    a('v_lshlrev_b32 v10, 1, v5')
    a('v_add_u32 v9, v9, v10')
    for e in range(4):
        a(f'v_add_u32 v{20+e}, {e*4096}, v9')
    groups = [(tw, tx, rq) for tw in range(WT) for tx in range(XT) for rq in range(4)]
    LB = 168
    for gi, (tw, tx, rq) in enumerate(groups):
        assert tx == 0
        offsd = (tw*32 + rq*8)*2
        offz = (tw*32 + rq*8)*4096
        b = LB + 8*gi
        a(f'buffer_load_dwordx2 v[{b}:{b+1}], v8, s[16:19], 0 offen offset:{offsd}')
        a(f'buffer_load_dwordx2 v[{b+2}:{b+3}], v8, s[20:23], 0 offen offset:{offsd}')
        a(f's_mov_b32 s3, {offz}')
        for e in range(4):
            a(f'buffer_load_ushort v{b+4+e}, v{20+e}, s[24:27], s3 offen')
    for gi, (tw, tx, rq) in enumerate(groups):
        offsd = (tw*32 + rq*8)*2
        b = LB + 8*gi
        a(f's_waitcnt vmcnt({6*(len(groups)-1-gi) + gi})')
        for e in range(4):
            r = accreg(tw, tx) + 4*rq + e
            if e % 2:
                a(f'v_and_b32 v24, 0xffff0000, v{b+e//2}')
                a(f'v_and_b32 v25, 0xffff0000, v{b+2+e//2}')
            else:
                a(f'v_lshlrev_b32 v24, 16, v{b+e//2}')
                a(f'v_lshlrev_b32 v25, 16, v{b+2+e//2}')
            a(f'v_lshlrev_b32 v26, 16, v{b+4+e}')
            a('v_mul_f32 v25, v25, v26')
            bf16r(a, 25, 25)
            a('v_add_f32 v24, v24, v25')
            bf16r(a, 24, 24)
            bf16r(a, r, r)
            a(f'v_add_f32 v{28+e}, v24, v{r}')
        a('v_cvt_pk_bf16_f32 v26, v28, v29')
        a('v_cvt_pk_bf16_f32 v27, v30, v31')
        a(f'buffer_store_dwordx2 v[26:27], v8, s[28:31], 0 offen offset:{offsd}')

def gen_gemm1():
    return gen_gemm('gemm1', D, 128, 128, 27, 16, WS_WGU, 2*F, WS_XN, epi1, NBUF=2)

def epi2_pre(a, *args):
    for e in range(1, 4):
        pass
    return epi2(a, *args)

def gen_gemm2():
    t, n, l, v = gen_gemm('gemm2', F, 128, 64, 5, 32, WS_WD, D, WS_H, epi2, NBUF=4)
    return t, n, l, 232
```

```python
import sys
from common import *
import prep

def build(which):
    out = []
    launches = []
    body = []
    if 'prep' in which:
        txt, n = prep.gen_prep()
        body.append(kernel_head('prep_kernel') + txt + kernel_desc('prep_kernel', 112, 64))
        launches.append(f'; @launch kernel=prep_kernel grid=({n},1,1) block=(256,1,1) lds={64*prep.TSTRIDE}')
    if 'mix' in which:
        import conv, gemm
        from prep import sdivmod
        t1, n1, l1, v1 = gemm.gen_gemm1()
        t2, n2, l2, v2 = conv.gen_conv()
        a = Asm()
        NG = 216
        a(f's_cmp_ge_u32 s2, {NG*5}')
        a('s_cbranch_scc1 mix_end')
        a('s_and_b32 s6, s2, 7')
        a('s_lshr_b32 s7, s2, 3')
        sdivmod(a, 4, 5, 7, 5, NG, 3)
        a('s_cmp_ge_u32 s5, 2')
        a('s_cbranch_scc1 mix_conv')
        a('s_lshl_b32 s4, s4, 1')
        a('s_add_u32 s4, s4, s5')
        a('s_lshl_b32 s4, s4, 3')
        a('s_add_u32 s2, s4, s6')
        a('s_branch mix_gemm')
        a.label('mix_conv')
        a('s_mul_i32 s4, s4, 3')
        a('s_add_u32 s4, s4, s5')
        a('s_sub_u32 s4, s4, 2')
        a('s_lshl_b32 s4, s4, 3')
        a('s_add_u32 s2, s4, s6')
        a('s_branch mix_convbody')
        a.label('mix_end')
        a('s_endpgm')
        a.label('mix_gemm')
        txt = a.text() + t1 + 'mix_convbody:\n' + t2
        body.append(kernel_head('mix_kernel') + txt + kernel_desc('mix_kernel', max(v1, v2), 64))
        launches.append(f'; @launch kernel=mix_kernel grid=({NG*5},1,1) block=(256,1,1) lds={max(l1, l2)}')
    if 'conv' in which:
        import conv
        txt, n, lds, vg = conv.gen_conv()
        body.append(kernel_head('conv_kernel') + txt + kernel_desc('conv_kernel', vg, 64))
        launches.append(f'; @launch kernel=conv_kernel grid=({n},1,1) block=(256,1,1) lds={lds}')
    if 'gemm1' in which:
        import gemm
        txt, n, lds, vg = gemm.gen_gemm1()
        body.append(kernel_head('gemm1_kernel') + txt + kernel_desc('gemm1_kernel', vg, 64))
        launches.append(f'; @launch kernel=gemm1_kernel grid=({n},1,1) block=(256,1,1) lds={lds}')
    if 'gemm2' in which:
        import gemm
        txt, n, lds, vg = gemm.gen_gemm2()
        body.append(kernel_head('gemm2_kernel') + txt + kernel_desc('gemm2_kernel', vg, 64))
        launches.append(f'; @launch kernel=gemm2_kernel grid=({n},1,1) block=(256,1,1) lds={lds}')
    hdr = '\n'.join(launches) + '\n.amdgcn_target "amdgcn-amd-amdhsa--gfx950"\n.text\n'
    return hdr + '\n'.join(body)

if __name__ == '__main__':
    which = sys.argv[2:] if len(sys.argv) > 2 else ['prep', 'mix', 'gemm2']
    open(sys.argv[1], 'w').write(build(which))
```
